```python
import torch

def _softmax(x, axis=-1):
    return torch.softmax(x, dim=axis)
def _gelu(x):
    return torch.nn.functional.gelu(x, approximate="tanh")
def _silu(x):
    return torch.nn.functional.silu(x)
def _sigmoid(x):
    return torch.sigmoid(x)
def _layernorm(x, axis=-1, eps=1e-5):
    m = x.mean(dim=axis, keepdim=True)
    v = x.var(dim=axis, keepdim=True, unbiased=False)
    return (x - m) / torch.sqrt(v + eps)
def _scatter_add(tgt, idx, src, axis=0):
    return tgt.clone().index_add_(axis, idx, src)
def _segment_sum(src, seg, n):
    out = torch.zeros((n,) + src.shape[1:], dtype=src.dtype)
    return out.index_add_(0, seg, src)
def _pad(x, pw):
    flat = tuple(v for pair in reversed(pw) for v in pair)
    return torch.nn.functional.pad(x, flat)

kernel_name = 'standalone__mha_block_cached__near_ridge'

def setup_inputs():

    _w = (lambda a: (lambda t: t.to(torch.bfloat16) if t.is_floating_point() else t)(torch.as_tensor(a)))
    B, Sq, D = 16, 32, 1024
    H, Sk, Dh = 32, 32, 128
    return {
        "x": _w((lambda *s: torch.randn(*s, dtype=torch.bfloat16) * 0.8)(B, Sq, D)),
        "k_cache": _w((lambda *s: torch.randn(*s, dtype=torch.bfloat16) * 0.8)(B, H, Sk, Dh)),
        "v_cache": _w((lambda *s: torch.randn(*s, dtype=torch.bfloat16) * 0.05)(B, H, Sk, Dh)),
        "wq": _w((lambda *s: torch.randn(*s, dtype=torch.bfloat16) * 0.8)(D, H * Dh) * (D ** -0.5)),
        "wo": _w((lambda *s: torch.randn(*s, dtype=torch.bfloat16) * 0.05)(H * Dh, D) * ((H * Dh) ** -0.5)),
    }

def reference(x, k_cache, v_cache, wq, wo):
    B, Sq, D = x.shape
    H, Dh = 32, 128
    q = (lambda x, *d: x.permute(*d))((x @ wq).reshape(B, Sq, H, Dh), 0, 2, 1, 3)
    scores = torch.einsum("bhqd,bhkd->bhqk", q, k_cache) * (Dh ** -0.5)
    p = _softmax(scores, axis=-1)
    o = torch.einsum("bhqk,bhkd->bhqd", p, v_cache)
    return (lambda x, *d: x.permute(*d))(o, 0, 2, 1, 3).reshape(B, Sq, H * Dh) @ wo
```

```python
L=[]
def e(s): L.append("    "+s)
def lab(s): L.append(s+":")
def srd(d,b,n):
    e(f"s_mov_b32 s{d}, s{b}"); e(f"s_mov_b32 s{d+1}, s{b+1}"); e(f"s_mov_b32 s{d+2}, {n}"); e(f"s_mov_b32 s{d+3}, 0x00020000")
hdr=open('standalone__mha_block_cached__near_ridge.s.ref').read().split('; Override')[0]
L.append(hdr.rstrip())
L.append("; @launch kernel=k1_kernel grid=(256,1,1) block=(256,1,1) lds=90112")
L.append("; @launch kernel=k2_kernel grid=(256,1,1) block=(256,1,1) lds=131072")
L.append('.amdgcn_target "amdgcn-amd-amdhsa--gfx950"\n.text')
def head(n):
    L.append(f".globl {n}\n.p2align 8\n.type {n},@function"); lab(n)
head("k1_kernel")
e("s_cmp_ge_u32 s2, 256"); e("s_cbranch_scc1 k1_end")
e("s_load_dwordx8 s[4:11], s[0:1], 0"); e("s_load_dwordx2 s[12:13], s[0:1], 56")
e("v_lshrrev_b32 v2, 6, v0"); e("v_and_b32 v1, 63, v0"); e("s_nop 0"); e("v_readfirstlane_b32 s36, v2")
e("s_and_b32 s37, s2, 7"); e("s_lshl_b32 s37, s37, 2"); e("s_lshr_b32 s3, s2, 3"); e("s_and_b32 s38, s3, 3"); e("s_add_u32 s37, s37, s38")
e("s_lshr_b32 s38, s3, 2")
e("s_lshr_b32 s39, s36, 1"); e("s_and_b32 s40, s36, 1")
e("s_waitcnt lgkmcnt(0)")
srd(16,4,1<<20); srd(20,6,1<<22); srd(24,8,1<<22); srd(28,10,1<<23); srd(32,12,1<<22)
e("v_lshrrev_b32 v3, 5, v1"); e("v_and_b32 v4, 31, v1")
e("s_lshl_b32 s43, s38, 1"); e("s_add_u32 s43, s43, s39")
e("s_lshl_b32 s44, s43, 5"); e("s_add_u32 s44, s44, s37"); e("s_lshl_b32 s44, s44, 13")
e("s_lshl_b32 s45, s40, 7"); e("s_add_u32 s45, s45, s44")
e("v_lshlrev_b32 v5, 8, v4"); e("v_lshl_add_u32 v5, v3, 3, v5"); e("v_add_u32 v5, s45, v5")
KR=200
for t in range(4):
    for ee in range(2):
        e(f"buffer_load_dwordx2 v[{KR+4*t+2*ee}:{KR+4*t+2*ee+1}], v5, s[20:23], 0 offen offset:{(t*16+8*ee)*2}")
e("v_lshrrev_b32 v6, 4, v1"); e("v_and_b32 v7, 15, v1"); e("v_lshlrev_b32 v8, 2, v6"); e("v_xor_b32 v7, v7, v8")
e("v_lshlrev_b32 v9, 8, v6"); e("v_lshl_add_u32 v9, v7, 4, v9")
e("s_lshl_b32 s45, s40, 12"); e("s_add_u32 s45, s45, s44")
e("s_lshl_b32 s46, s36, 12");
for pp in range(4):
    e(f"s_add_u32 m0, s46, {73728+pp*1024}"); e(f"s_add_u32 s47, s45, {pp*1024}")
    e(f"buffer_load_dwordx4 v9, s[24:27], s47 offen lds")
e("s_lshl_b32 s45, s36, 17"); e("s_lshl_b32 s47, s37, 8"); e("s_add_u32 s45, s45, s47")
e("v_lshlrev_b32 v10, 13, v6"); e("v_lshl_add_u32 v10, v7, 4, v10"); e("v_add_u32 v10, s45, v10")
for pp in range(1,4): e(f"v_add_u32 v{10+pp}, {pp*32768}, v10")
e("v_lshrrev_b32 v16, 3, v1"); e("s_lshl_b32 s45, s36, 4"); e("v_add_u32 v16, s45, v16")
for pp in range(2):
    e(f"v_add_u32 v17, {8*pp}, v16"); e("v_lshrrev_b32 v18, 1, v17"); e("v_and_b32 v18, 7, v18"); e("v_and_b32 v19, 7, v1"); e("v_xor_b32 v18, v18, v19")
    e("s_lshl_b32 s45, s38, 6"); e("v_add_u32 v17, s45, v17"); e("v_lshlrev_b32 v17, 11, v17"); e(f"v_lshl_add_u32 v{14+pp}, v18, 4, v17")
e("v_bfe_u32 v22, v1, 2, 2")
e("v_and_b32 v23, 3, v1")
e("v_bfe_u32 v24, v1, 4, 1"); e("v_lshlrev_b32 v24, 1, v24"); e("v_lshrrev_b32 v25, 1, v23"); e("v_add_u32 v24, v24, v25")
e("s_lshl_b32 s45, s40, 3"); e("v_add_u32 v24, s45, v24")
e("v_lshl_add_u32 v25, v3, 3, v22"); e("v_lshlrev_b32 v25, 8, v25"); e("v_and_b32 v26, 1, v23"); e("v_lshl_add_u32 v25, v26, 3, v25")
for db in range(2):
    e(f"v_add_u32 v26, {4*db}, v24"); e("v_lshlrev_b32 v27, 2, v22"); e("v_xor_b32 v26, v26, v27"); e(f"v_lshl_add_u32 v{20+db}, v26, 4, v25")
e("s_lshl_b32 s45, s39, 5"); e("v_add_u32 v26, s45, v4"); e("v_lshrrev_b32 v27, 1, v26"); e("v_and_b32 v27, 7, v27")
e("v_lshlrev_b32 v26, 7, v26"); e("v_add_u32 v26, 49152, v26")
for j in range(4):
    e(f"v_add_u32 v32, {2*j}, v3"); e("v_xor_b32 v32, v32, v27"); e(f"v_lshl_add_u32 v{28+j}, v32, 4, v26")
for i in range(32): e(f"v_mov_b32 v{64+i}, 0")
e("s_lshl_b32 s48, s36, 11"); e("s_lshl_b32 s49, s36, 12")
def issue(s):
    b=s%3
    for pp in range(2):
        e(f"s_add_u32 m0, s48, {49152+b*8192+pp*1024}"); e(f"s_mov_b32 s41, {s*128}")
        e(f"buffer_load_dwordx4 v{14+pp}, s[16:19], s41 offen lds")
    for pp in range(4):
        e(f"s_add_u32 m0, s49, {b*16384+pp*1024}"); e(f"s_mov_b32 s41, {s*64*8192}")
        e(f"buffer_load_dwordx4 v{10+pp}, s[28:31], s41 offen lds")
issue(0); issue(1)
for s in range(16):
    e(f"s_waitcnt vmcnt({6 if s<15 else 0})"); e("s_barrier")
    if s+2<16: issue(s+2)
    b=s%3
    for j in range(4):
        R=100+12*j
        e(f"ds_read_b128 v[{R}:{R+3}], v{28+j} offset:{b*8192}")
        for db in range(2):
            for rd in range(2):
                e(f"ds_read_b64_tr_b16 v[{R+4+4*db+2*rd}:{R+5+4*db+2*rd}], v{20+db} offset:{b*16384+j*4096+rd*1024}")
    for j in range(4):
        R=100+12*j
        e(f"s_waitcnt lgkmcnt({15-5*j})")
        for db in range(2):
            e(f"v_mfma_f32_32x32x16_bf16 v[{64+16*db}:{79+16*db}], v[{R+4+4*db}:{R+7+4*db}], v[{R}:{R+3}], v[{64+16*db}:{79+16*db}]")
e("s_nop 15"); e("s_nop 7")
for t in range(4):
    a=64+16*(t>>1)+8*(t&1)
    for i in range(4): e(f"v_cvt_pk_bf16_f32 v{100+4*t+i}, v{a+2*i}, v{a+2*i+1}")
for i in range(16): e(f"v_mov_b32 v{128+i}, 0")
e("s_nop 2")
for t in range(4): e(f"v_mfma_f32_32x32x16_bf16 v[128:143], v[{KR+4*t}:{KR+4*t+3}], v[{100+4*t}:{103+4*t}], v[128:143]")
e("s_nop 15"); e("s_nop 7"); e("s_barrier")
e("v_lshlrev_b32 v5, 4, v1"); e("v_add_u32 v6, s49, v5"); e("s_xor_b32 s45, s49, 4096"); e("v_add_u32 v7, s45, v5")
for q in range(4): e(f"ds_write_b128 v6, v[{128+4*q}:{131+4*q}] offset:{q*1024}")
e("s_waitcnt lgkmcnt(0)"); e("s_barrier")
for q in range(4): e(f"ds_read_b128 v[{144+4*q}:{147+4*q}], v7 offset:{q*1024}")
e("s_waitcnt lgkmcnt(0)")
for i in range(16): e(f"v_add_f32 v{128+i}, v{128+i}, v{144+i}")
e("v_max_f32 v8, v128, v129")
for i in range(2,16): e(f"v_max_f32 v8, v8, v{128+i}")
e("v_mov_b32 v9, v8"); e("s_nop 1"); e("v_permlane32_swap_b32 v8, v9"); e("s_nop 1"); e("v_max_f32 v8, v8, v9")
e("s_mov_b32 s45, 0x3e0296a9")
e("v_mov_b32 v10, 0")
for i in range(16):
    e(f"v_sub_f32 v{128+i}, v{128+i}, v8"); e(f"v_mul_f32 v{128+i}, s45, v{128+i}"); e(f"v_exp_f32 v{128+i}, v{128+i}"); e("s_nop 0"); e(f"v_add_f32 v10, v10, v{128+i}")
e("v_mov_b32 v9, v10"); e("s_nop 1"); e("v_permlane32_swap_b32 v10, v9"); e("s_nop 1"); e("v_add_f32 v10, v10, v9"); e("v_rcp_f32 v10, v10"); e("s_nop 1")
for i in range(16): e(f"v_mul_f32 v{128+i}, v{128+i}, v10")
for i in range(8): e(f"v_cvt_pk_bf16_f32 v{100+i}, v{128+2*i}, v{129+2*i}")
e("v_lshlrev_b32 v11, 10, v3"); e("s_lshl_b32 s45, s39, 13"); e("s_add_u32 s45, s45, 73728")
for db in range(2): e(f"v_sub_u32 v{12+db}, v{20+db}, v11"); e(f"v_add_u32 v{12+db}, s45, v{12+db}")
for db in range(2):
    for u in range(2):
        for rd in range(2):
            R=144+8*db+4*u+2*rd
            e(f"ds_read_b64_tr_b16 v[{R}:{R+1}], v{12+db} offset:{u*4096+rd*2048}")
for i in range(32): e(f"v_mov_b32 v{64+i}, 0")
e("s_waitcnt lgkmcnt(0)")
for db in range(2):
    for u in range(2):
        R=144+8*db+4*u
        e(f"v_mfma_f32_32x32x16_bf16 v[{64+16*db}:{79+16*db}], v[{R}:{R+3}], v[{100+4*u}:{103+4*u}], v[{64+16*db}:{79+16*db}]")
e("s_nop 15"); e("s_nop 7")
e("s_lshl_b32 s45, s43, 8"); e("s_lshl_b32 s46, s37, 3"); e("s_add_u32 s45, s45, s46"); e("s_lshl_b32 s46, s40, 2"); e("s_add_u32 s45, s45, s46"); e("s_lshl_b32 s45, s45, 10")
for db in range(2):
    for u in range(2):
        a=64+16*db+8*u; R=100+4*(2*db+u)
        for i in range(4): e(f"v_cvt_pk_bf16_f32 v{R+i}, v{a+2*i}, v{a+2*i+1}")
        e("s_nop 1"); e(f"buffer_store_dwordx4 v[{R}:{R+3}], v5, s[32:35], s45 offen offset:{(2*db+u)*1024}")
lab("k1_end"); e("s_endpgm")
head("k2_kernel")
e("s_cmp_ge_u32 s2, 256"); e("s_cbranch_scc1 k2_end")
e("s_load_dwordx4 s[4:7], s[0:1], 32"); e("s_load_dwordx2 s[12:13], s[0:1], 56")
e("v_lshrrev_b32 v2, 6, v0"); e("v_and_b32 v1, 63, v0"); e("s_nop 0"); e("v_readfirstlane_b32 s36, v2")
e("s_and_b32 s37, s2, 7"); e("s_lshl_b32 s37, s37, 1"); e("s_lshr_b32 s3, s2, 3"); e("s_and_b32 s38, s3, 1"); e("s_add_u32 s37, s37, s38"); e("s_lshr_b32 s38, s3, 1")
e("s_waitcnt lgkmcnt(0)")
srd(16,4,1<<23); srd(20,6,1<<20); srd(32,12,1<<22)
e("v_lshrrev_b32 v3, 5, v1")
e("v_lshrrev_b32 v6, 3, v1"); e("v_bfe_u32 v7, v1, 4, 1"); e("v_lshlrev_b32 v7, 2, v7"); e("v_and_b32 v8, 7, v1"); e("v_xor_b32 v7, v7, v8")
e("s_lshl_b32 s45, s36, 21"); e("s_lshl_b32 s46, s37, 7"); e("s_add_u32 s45, s45, s46")
e("v_lshlrev_b32 v10, 11, v6"); e("v_lshl_add_u32 v10, v7, 4, v10"); e("v_add_u32 v10, s45, v10")
e("s_lshl_b32 s45, s38, 8"); e("s_lshl_b32 s46, s36, 6"); e("s_add_u32 s45, s45, s46"); e("s_lshl_b32 s45, s45, 10")
e("v_lshlrev_b32 v11, 4, v1"); e("v_add_u32 v11, s45, v11")
e("v_bfe_u32 v22, v1, 2, 2"); e("v_and_b32 v23, 3, v1")
e("v_bfe_u32 v24, v1, 4, 1"); e("v_lshlrev_b32 v24, 1, v24"); e("v_lshrrev_b32 v25, 1, v23"); e("v_add_u32 v24, v24, v25")
e("v_lshl_add_u32 v25, v3, 2, v22"); e("v_lshlrev_b32 v25, 7, v25"); e("v_and_b32 v26, 1, v23"); e("v_lshl_add_u32 v25, v26, 3, v25")
e("s_lshl_b32 s49, s36, 15"); e("v_add_u32 v25, s49, v25")
e("v_lshrrev_b32 v27, 1, v22"); e("v_lshlrev_b32 v27, 2, v27")
for nb in range(2):
    e(f"v_add_u32 v26, {4*nb}, v24"); e("v_xor_b32 v26, v26, v27"); e(f"v_lshl_add_u32 v{20+nb}, v26, 4, v25")
for i in range(32): e(f"v_mov_b32 v{64+i}, 0")
def issue2(s):
    b=s%4
    for pp in range(8):
        e(f"s_add_u32 m0, s49, {b*8192+pp*1024}"); e(f"s_mov_b32 s41, {(s*64+pp*8)*2048}")
        e(f"buffer_load_dwordx4 v10, s[16:19], s41 offen lds")
    for j in range(4):
        R=128+16*b+4*j
        e(f"s_mov_b32 s41, {(s*4+j)*1024}"); e(f"buffer_load_dwordx4 v[{R}:{R+3}], v11, s[32:35], s41 offen")
for s in range(3): issue2(s)
for s in range(16):
    e(f"s_waitcnt vmcnt({12*min(2,15-s)})")
    b=s%4
    for j in range(4):
        for nb in range(2):
            for rd in range(2):
                R=100+8*(j&1)+4*nb+2*rd+(16 if 0 else 0)
                e(f"ds_read_b64_tr_b16 v[{R}:{R+1}], v{20+nb} offset:{b*8192+j*2048+rd*1024}")
        e("s_waitcnt lgkmcnt(0)")
        Rb=128+16*b+4*j
        for nb in range(2):
            R=100+8*(j&1)+4*nb
            e(f"v_mfma_f32_32x32x16_bf16 v[{64+16*nb}:{79+16*nb}], v[{R}:{R+3}], v[{Rb}:{Rb+3}], v[{64+16*nb}:{79+16*nb}]")
    if s+3<16: issue2(s+3)
e("s_nop 15"); e("s_nop 7")
e("v_and_b32 v4, 31, v1"); e("s_movk_i32 s45, 272"); e("v_mul_lo_u32 v5, v4, s45"); e("v_lshl_add_u32 v5, v3, 4, v5"); e("v_add_u32 v5, s49, v5")
for nb in range(2):
    for q in range(4): e(f"ds_write_b128 v5, v[{64+16*nb+4*q}:{67+16*nb+4*q}] offset:{(nb*32+8*q)*4}")
e("s_waitcnt lgkmcnt(0)"); e("s_barrier")
e("v_lshrrev_b32 v6, 3, v0"); e("v_and_b32 v7, 7, v0"); e("v_mul_lo_u32 v5, v6, s45"); e("v_lshl_add_u32 v5, v7, 5, v5")
e("v_add_u32 v9, 65536, v5")
for w in range(4):
    for h in range(2): e(f"ds_read_b128 v[{100+8*w+4*h}:{103+8*w+4*h}], v{5 if w<2 else 9} offset:{(w&1)*32768+h*16}")
e("s_waitcnt lgkmcnt(0)")
for i in range(8):
    e(f"v_add_f32 v{100+i}, v{100+i}, v{108+i}"); e(f"v_add_f32 v{116+i}, v{116+i}, v{124+i}"); e(f"v_add_f32 v{100+i}, v{100+i}, v{116+i}")
for i in range(4): e(f"v_cvt_pk_bf16_f32 v{140+i}, v{100+2*i}, v{101+2*i}")
e("s_lshl_b32 s45, s38, 16"); e("s_lshl_b32 s46, s37, 7"); e("s_add_u32 s45, s45, s46")
e("v_lshlrev_b32 v6, 11, v6"); e("v_lshl_add_u32 v6, v7, 4, v6"); e("s_nop 1")
e("buffer_store_dwordx4 v[140:143], v6, s[20:23], s45 offen")
lab("k2_end"); e("s_endpgm")
L.append('.section .rodata,"a"')
for n in ("k1_kernel","k2_kernel"):
    L.append(f""".p2align 6
.amdhsa_kernel {n}
  .amdhsa_next_free_vgpr 256
  .amdhsa_next_free_sgpr 102
  .amdhsa_accum_offset 256
  .amdhsa_group_segment_fixed_size 0
  .amdhsa_kernarg_size 64
  .amdhsa_user_sgpr_count 2
  .amdhsa_user_sgpr_kernarg_segment_ptr 1
  .amdhsa_system_sgpr_workgroup_id_x 1
.end_amdhsa_kernel""")
open('standalone__mha_block_cached__near_ridge.s','w').write("\n".join(L)+"\n")
```

```python
L=[]
def e(s): L.append("    "+s)
def lab(s): L.append(s+":")
def srd(d,b,n):
    e(f"s_mov_b32 s{d}, s{b}"); e(f"s_mov_b32 s{d+1}, s{b+1}"); e(f"s_mov_b32 s{d+2}, {n}"); e(f"s_mov_b32 s{d+3}, 0x00020000")
hdr=open('standalone__mha_block_cached__near_ridge.s.ref').read().split('; Override')[0]
L.append(hdr.rstrip())
L.append("; @launch kernel=k1_kernel grid=(256,1,1) block=(256,1,1) lds=139264")
L.append("; @launch kernel=k2_kernel grid=(256,1,1) block=(256,1,1) lds=131072")
L.append("; @launch kernel=k3_kernel grid=(512,1,1) block=(256,1,1) lds=0")
L.append('.amdgcn_target "amdgcn-amd-amdhsa--gfx950"\n.text')
def head(n):
    L.append(f".globl {n}\n.p2align 8\n.type {n},@function"); lab(n)
head("k1_kernel")
e("s_cmp_ge_u32 s2, 256"); e("s_cbranch_scc1 k1_end")
e("s_load_dwordx8 s[4:11], s[0:1], 0"); e("s_load_dwordx2 s[12:13], s[0:1], 56")
e("v_lshrrev_b32 v2, 6, v0"); e("v_and_b32 v1, 63, v0"); e("s_nop 0"); e("v_readfirstlane_b32 s36, v2")
e("s_and_b32 s37, s2, 7"); e("s_lshl_b32 s37, s37, 2"); e("s_lshr_b32 s3, s2, 3"); e("s_and_b32 s38, s3, 3"); e("s_add_u32 s37, s37, s38")
e("s_lshr_b32 s38, s3, 2")
e("s_lshr_b32 s39, s36, 1"); e("s_and_b32 s40, s36, 1")
e("s_waitcnt lgkmcnt(0)")
srd(16,4,1<<20); srd(20,6,1<<22); srd(24,8,1<<22); srd(28,10,1<<23); srd(32,12,1<<22)
e("v_lshrrev_b32 v3, 5, v1"); e("v_and_b32 v4, 31, v1")
e("s_lshl_b32 s43, s38, 1"); e("s_add_u32 s43, s43, s39")
e("s_lshl_b32 s44, s43, 5"); e("s_add_u32 s44, s44, s37"); e("s_lshl_b32 s44, s44, 13")
e("s_lshl_b32 s45, s40, 7"); e("s_add_u32 s45, s45, s44")
e("v_lshlrev_b32 v5, 8, v4"); e("v_lshl_add_u32 v5, v3, 3, v5"); e("v_add_u32 v5, s45, v5")
KR=200
for t in range(4):
    for ee in range(2):
        e(f"buffer_load_dwordx2 v[{KR+4*t+2*ee}:{KR+4*t+2*ee+1}], v5, s[20:23], 0 offen offset:{(t*16+8*ee)*2}")
e("v_lshrrev_b32 v6, 4, v1"); e("v_and_b32 v7, 15, v1"); e("v_lshlrev_b32 v8, 2, v6"); e("v_xor_b32 v7, v7, v8")
e("v_lshlrev_b32 v9, 8, v6"); e("v_lshl_add_u32 v9, v7, 4, v9")
e("s_lshl_b32 s45, s40, 12"); e("s_add_u32 s45, s45, s44")
e("s_lshl_b32 s46, s36, 12");
for pp in range(4):
    e(f"s_add_u32 m0, s46, {122880+pp*1024}"); e(f"s_add_u32 s47, s45, {pp*1024}")
    e(f"buffer_load_dwordx4 v9, s[24:27], s47 offen lds")
e("s_lshl_b32 s45, s36, 17"); e("s_lshl_b32 s47, s37, 8"); e("s_add_u32 s45, s45, s47")
e("v_lshlrev_b32 v10, 13, v6"); e("v_lshl_add_u32 v10, v7, 4, v10"); e("v_add_u32 v10, s45, v10")
for pp in range(1,4): e(f"v_add_u32 v{10+pp}, {pp*32768}, v10")
e("v_lshrrev_b32 v16, 3, v1"); e("s_lshl_b32 s45, s36, 4"); e("v_add_u32 v16, s45, v16")
for pp in range(2):
    e(f"v_add_u32 v17, {8*pp}, v16"); e("v_lshrrev_b32 v18, 1, v17"); e("v_and_b32 v18, 7, v18"); e("v_and_b32 v19, 7, v1"); e("v_xor_b32 v18, v18, v19")
    e("s_lshl_b32 s45, s38, 6"); e("v_add_u32 v17, s45, v17"); e("v_lshlrev_b32 v17, 11, v17"); e(f"v_lshl_add_u32 v{14+pp}, v18, 4, v17")
e("v_bfe_u32 v22, v1, 2, 2")
e("v_and_b32 v23, 3, v1")
e("v_bfe_u32 v24, v1, 4, 1"); e("v_lshlrev_b32 v24, 1, v24"); e("v_lshrrev_b32 v25, 1, v23"); e("v_add_u32 v24, v24, v25")
e("s_lshl_b32 s45, s40, 3"); e("v_add_u32 v24, s45, v24")
e("v_lshl_add_u32 v25, v3, 3, v22"); e("v_lshlrev_b32 v25, 8, v25"); e("v_and_b32 v26, 1, v23"); e("v_lshl_add_u32 v25, v26, 3, v25")
for db in range(2):
    e(f"v_add_u32 v26, {4*db}, v24"); e("v_lshlrev_b32 v27, 2, v22"); e("v_xor_b32 v26, v26, v27"); e(f"v_lshl_add_u32 v{20+db}, v26, 4, v25")
e("s_lshl_b32 s45, s39, 5"); e("v_add_u32 v26, s45, v4"); e("v_lshrrev_b32 v27, 1, v26"); e("v_and_b32 v27, 7, v27")
e("v_lshlrev_b32 v26, 7, v26"); e("v_add_u32 v26, 16384, v26")
for j in range(4):
    e(f"v_add_u32 v32, {2*j}, v3"); e("v_xor_b32 v32, v32, v27"); e(f"v_lshl_add_u32 v{28+j}, v32, 4, v26")
for i in range(32): e(f"v_mov_b32 v{64+i}, 0")
e("s_lshl_b32 s50, s38, 1"); e("s_lshl_b32 s48, s36, 11"); e("s_lshl_b32 s49, s36, 12")
def issue(s):
    b=s%5
    for pp in range(2):
        e(f"s_add_u32 m0, s48, {16384+b*24576+pp*1024}"); e(f"s_add_u32 s41, s50, {s}"); e("s_and_b32 s41, s41, 15"); e("s_lshl_b32 s41, s41, 7")
        e(f"buffer_load_dwordx4 v{14+pp}, s[16:19], s41 offen lds")
    for pp in range(4):
        e(f"s_add_u32 m0, s49, {b*24576+pp*1024}"); e(f"s_add_u32 s41, s50, {s}"); e("s_and_b32 s41, s41, 15"); e("s_lshl_b32 s41, s41, 19")
        e(f"buffer_load_dwordx4 v{10+pp}, s[28:31], s41 offen lds")
for s in range(4): issue(s)
for s in range(16):
    e(f"s_waitcnt vmcnt({6*min(3,15-s)})"); e("s_barrier")
    if s+4<16: issue(s+4)
    b=s%5
    for i in range(6): e(f"v_add_u32 v{40+i}, {b*24576}, v{(20,21,28,29,30,31)[i]}")
    for j in range(4):
        R=100+12*j
        e(f"ds_read_b128 v[{R}:{R+3}], v{42+j}")
        for db in range(2):
            for rd in range(2):
                e(f"ds_read_b64_tr_b16 v[{R+4+4*db+2*rd}:{R+5+4*db+2*rd}], v{40+db} offset:{j*4096+rd*1024}")
    for j in range(4):
        R=100+12*j
        e(f"s_waitcnt lgkmcnt({15-5*j})")
        for db in range(2):
            e(f"v_mfma_f32_32x32x16_bf16 v[{64+16*db}:{79+16*db}], v[{R+4+4*db}:{R+7+4*db}], v[{R}:{R+3}], v[{64+16*db}:{79+16*db}]")
e("s_nop 15"); e("s_nop 7")
for t in range(4):
    a=64+16*(t>>1)+8*(t&1)
    for i in range(4): e(f"v_cvt_pk_bf16_f32 v{100+4*t+i}, v{a+2*i}, v{a+2*i+1}")
for i in range(16): e(f"v_mov_b32 v{128+i}, 0")
e("s_nop 2")
for t in range(4): e(f"v_mfma_f32_32x32x16_bf16 v[128:143], v[{KR+4*t}:{KR+4*t+3}], v[{100+4*t}:{103+4*t}], v[128:143]")
e("s_nop 15"); e("s_nop 7"); e("s_barrier")
e("v_lshlrev_b32 v5, 4, v1"); e("v_add_u32 v6, s49, v5"); e("s_xor_b32 s45, s49, 4096"); e("v_add_u32 v7, s45, v5")
for q in range(4): e(f"ds_write_b128 v6, v[{128+4*q}:{131+4*q}] offset:{q*1024}")
e("s_waitcnt lgkmcnt(0)"); e("s_barrier")
for q in range(4): e(f"ds_read_b128 v[{144+4*q}:{147+4*q}], v7 offset:{q*1024}")
e("s_waitcnt lgkmcnt(0)")
for i in range(16): e(f"v_add_f32 v{128+i}, v{128+i}, v{144+i}")
e("v_max_f32 v8, v128, v129")
for i in range(2,16): e(f"v_max_f32 v8, v8, v{128+i}")
e("v_mov_b32 v9, v8"); e("s_nop 1"); e("v_permlane32_swap_b32 v8, v9"); e("s_nop 1"); e("v_max_f32 v8, v8, v9")
e("s_mov_b32 s45, 0x3e0296a9")
e("v_mov_b32 v10, 0")
for i in range(16):
    e(f"v_sub_f32 v{128+i}, v{128+i}, v8"); e(f"v_mul_f32 v{128+i}, s45, v{128+i}"); e(f"v_exp_f32 v{128+i}, v{128+i}"); e("s_nop 0"); e(f"v_add_f32 v10, v10, v{128+i}")
e("v_mov_b32 v9, v10"); e("s_nop 1"); e("v_permlane32_swap_b32 v10, v9"); e("s_nop 1"); e("v_add_f32 v10, v10, v9"); e("v_rcp_f32 v10, v10"); e("s_nop 1")
for i in range(16): e(f"v_mul_f32 v{128+i}, v{128+i}, v10")
for i in range(8): e(f"v_cvt_pk_bf16_f32 v{100+i}, v{128+2*i}, v{129+2*i}")
e("v_lshlrev_b32 v11, 10, v3"); e("s_lshl_b32 s45, s39, 13"); e("s_add_u32 s45, s45, 122880")
for db in range(2): e(f"v_sub_u32 v{12+db}, v{20+db}, v11"); e(f"v_add_u32 v{12+db}, s45, v{12+db}")
for db in range(2):
    for u in range(2):
        for rd in range(2):
            R=144+8*db+4*u+2*rd
            e(f"ds_read_b64_tr_b16 v[{R}:{R+1}], v{12+db} offset:{u*4096+rd*2048}")
for i in range(32): e(f"v_mov_b32 v{64+i}, 0")
e("s_waitcnt lgkmcnt(0)")
for db in range(2):
    for u in range(2):
        R=144+8*db+4*u
        e(f"v_mfma_f32_32x32x16_bf16 v[{64+16*db}:{79+16*db}], v[{R}:{R+3}], v[{100+4*u}:{103+4*u}], v[{64+16*db}:{79+16*db}]")
e("s_nop 15"); e("s_nop 7")
e("s_lshl_b32 s45, s43, 8"); e("s_lshl_b32 s46, s37, 3"); e("s_add_u32 s45, s45, s46"); e("s_lshl_b32 s46, s40, 2"); e("s_add_u32 s45, s45, s46"); e("s_lshl_b32 s45, s45, 10")
for db in range(2):
    for u in range(2):
        a=64+16*db+8*u; R=100+4*(2*db+u)
        for i in range(4): e(f"v_cvt_pk_bf16_f32 v{R+i}, v{a+2*i}, v{a+2*i+1}")
        e("s_nop 1"); e(f"buffer_store_dwordx4 v[{R}:{R+3}], v5, s[32:35], s45 offen offset:{(2*db+u)*1024}")
lab("k1_end"); e("s_endpgm")
head("k2_kernel")
e("s_cmp_ge_u32 s2, 256"); e("s_cbranch_scc1 k2_end")
e("s_load_dwordx2 s[4:5], s[0:1], 32"); e("s_load_dwordx2 s[12:13], s[0:1], 56")
e("v_lshrrev_b32 v2, 6, v0"); e("v_and_b32 v1, 63, v0"); e("s_nop 0"); e("v_readfirstlane_b32 s36, v2")
e("s_and_b32 s39, s2, 7"); e("s_lshr_b32 s3, s2, 3"); e("s_and_b32 s38, s3, 3"); e("s_lshr_b32 s37, s3, 2")
e("s_lshr_b32 s40, s36, 1"); e("s_and_b32 s42, s36, 1")
e("s_waitcnt lgkmcnt(0)")
srd(16,4,1<<23); srd(32,12,20<<20)
e("v_lshrrev_b32 v3, 5, v1")
e("v_lshrrev_b32 v6, 4, v1"); e("v_and_b32 v7, 15, v1"); e("v_lshlrev_b32 v8, 2, v6"); e("v_xor_b32 v7, v7, v8")
e("s_lshl_b32 s45, s39, 20"); e("s_lshl_b32 s46, s36, 15"); e("s_add_u32 s45, s45, s46"); e("s_lshl_b32 s46, s37, 8"); e("s_add_u32 s45, s45, s46")
e("v_lshlrev_b32 v10, 11, v6"); e("v_lshl_add_u32 v10, v7, 4, v10"); e("v_add_u32 v10, s45, v10")
for pp in range(1,4): e(f"v_add_u32 v{10+pp}, {pp*8192}, v10")
e("s_lshl_b32 s45, s38, 2"); e("s_add_u32 s45, s45, s36"); e("s_lshl_b32 s45, s45, 8"); e("s_lshl_b32 s46, s39, 5"); e("s_add_u32 s45, s45, s46"); e("s_lshl_b32 s45, s45, 10")
e("v_lshlrev_b32 v5, 4, v1"); e("v_add_u32 v14, s45, v5")
e("v_bfe_u32 v22, v1, 2, 2"); e("v_and_b32 v23, 3, v1")
e("v_bfe_u32 v24, v1, 4, 1"); e("v_lshlrev_b32 v24, 1, v24"); e("v_lshrrev_b32 v25, 1, v23"); e("v_add_u32 v24, v24, v25")
e("s_lshl_b32 s45, s42, 3"); e("v_add_u32 v24, s45, v24")
e("v_lshl_add_u32 v25, v3, 2, v22"); e("v_lshlrev_b32 v25, 8, v25"); e("v_and_b32 v26, 1, v23"); e("v_lshl_add_u32 v25, v26, 3, v25")
for nb in range(2):
    e(f"v_add_u32 v26, {4*nb}, v24"); e("v_lshlrev_b32 v27, 2, v22"); e("v_xor_b32 v26, v26, v27"); e(f"v_lshl_add_u32 v{20+nb}, v26, 4, v25")
e("s_lshl_b32 s45, s40, 13"); e("s_add_u32 s45, s45, 16384"); e("v_add_u32 v28, s45, v5")
for i in range(64): e(f"v_mov_b32 v{64+i}, 0")
e("s_lshl_b32 s49, s36, 12")
def issue2(s):
    b=s%4
    for pp in range(4):
        e(f"s_add_u32 m0, s49, {b*32768+pp*1024}"); e(f"s_mov_b32 s41, {s*64*2048}")
        e(f"buffer_load_dwordx4 v{10+pp}, s[16:19], s41 offen lds")
    for pp in range(4):
        e(f"s_add_u32 m0, s49, {b*32768+16384+pp*1024}"); e(f"s_mov_b32 s41, {(s*4+pp)*1024}")
        e(f"buffer_load_dwordx4 v14, s[32:35], s41 offen lds")
for s in range(3): issue2(s)
for s in range(8):
    e(f"s_waitcnt vmcnt({8*min(2,7-s)})"); e("s_barrier")
    if s+3<8: issue2(s+3)
    b=s%4
    for i in range(3): e(f"v_add_u32 v{40+i}, {b*32768}, v{(20,21,28)[i]}")
    for j in range(4):
        R=128+16*j
        for mb in range(2): e(f"ds_read_b128 v[{R+4*mb}:{R+4*mb+3}], v42 offset:{mb*4096+j*1024}")
        for nb in range(2):
            for rd in range(2):
                e(f"ds_read_b64_tr_b16 v[{R+8+4*nb+2*rd}:{R+9+4*nb+2*rd}], v{40+nb} offset:{j*4096+rd*2048}")
        if j==1: e("s_waitcnt lgkmcnt(6)")
        if j>=1:
            jj=j-1; Rr=128+16*jj
            if j>1: e("s_waitcnt lgkmcnt(6)")
            for mb in range(2):
                for nb in range(2):
                    A=64+32*mb+16*nb
                    e(f"v_mfma_f32_32x32x16_bf16 v[{A}:{A+15}], v[{Rr+8+4*nb}:{Rr+11+4*nb}], v[{Rr+4*mb}:{Rr+4*mb+3}], v[{A}:{A+15}]")
    e("s_waitcnt lgkmcnt(0)"); Rr=128+48
    for mb in range(2):
        for nb in range(2):
            A=64+32*mb+16*nb
            e(f"v_mfma_f32_32x32x16_bf16 v[{A}:{A+15}], v[{Rr+8+4*nb}:{Rr+11+4*nb}], v[{Rr+4*mb}:{Rr+4*mb+3}], v[{A}:{A+15}]")
e("s_nop 15"); e("s_nop 7")
e("s_lshl_b32 s45, s39, 2"); e("s_add_u32 s45, s45, s38"); e("s_lshl_b32 s45, s45, 3"); e("s_add_u32 s45, s45, s37"); e("s_lshl_b32 s45, s45, 2"); e("s_add_u32 s45, s45, s36")
e("s_lshl_b32 s45, s45, 14"); e("s_add_u32 s45, s45, 0x400000")
for i in range(16):
    if i%4==0 and i: e(f"s_add_u32 s45, s45, 4096")
    e(f"buffer_store_dwordx4 v[{64+4*i}:{67+4*i}], v5, s[32:35], s45 offen offset:{(i%4)*1024}")
lab("k2_end"); e("s_endpgm")
head("k3_kernel")
e("s_cmp_ge_u32 s2, 512"); e("s_cbranch_scc1 k3_end")
e("s_load_dwordx2 s[4:5], s[0:1], 40"); e("s_load_dwordx2 s[12:13], s[0:1], 56")
e("s_lshl_b32 s3, s2, 8"); e("v_add_u32 v1, s3, v0"); e("v_lshlrev_b32 v2, 4, v1")
e("s_waitcnt lgkmcnt(0)")
srd(16,4,1<<20); srd(32,12,20<<20)
for k in range(8):
    e(f"s_mov_b32 s20, {0x400000+k*0x200000}"); e(f"buffer_load_dwordx4 v[{8+4*k}:{11+4*k}], v2, s[32:35], s20 offen")
e("v_and_b32 v3, 31, v1"); e("v_bfe_u32 v4, v1, 9, 1"); e("v_lshl_add_u32 v3, v4, 5, v3"); e("v_bfe_u32 v4, v1, 11, 1"); e("v_lshl_add_u32 v3, v4, 6, v3")
e("v_bfe_u32 v4, v1, 15, 2"); e("v_lshl_add_u32 v3, v4, 7, v3")
e("v_bfe_u32 v5, v1, 5, 1"); e("v_lshlrev_b32 v5, 2, v5"); e("v_bfe_u32 v4, v1, 6, 2"); e("v_lshl_add_u32 v5, v4, 3, v5")
e("v_bfe_u32 v4, v1, 8, 1"); e("v_lshl_add_u32 v5, v4, 5, v5"); e("v_bfe_u32 v4, v1, 10, 1"); e("v_lshl_add_u32 v5, v4, 6, v5")
e("v_bfe_u32 v4, v1, 12, 3"); e("v_lshl_add_u32 v5, v4, 7, v5")
e("v_lshlrev_b32 v3, 11, v3"); e("v_lshl_add_u32 v3, v5, 1, v3")
e("s_waitcnt vmcnt(0)")
for k in range(1,8):
    for i in range(4): e(f"v_add_f32 v{8+i}, v{8+i}, v{8+4*k+i}")
e("v_cvt_pk_bf16_f32 v6, v8, v9"); e("v_cvt_pk_bf16_f32 v7, v10, v11"); e("s_nop 1")
e("buffer_store_dwordx2 v[6:7], v3, s[16:19], 0 offen")
lab("k3_end"); e("s_endpgm")
L.append('.section .rodata,"a"')
for n in ("k1_kernel","k2_kernel","k3_kernel"):
    L.append(f""".p2align 6
.amdhsa_kernel {n}
  .amdhsa_next_free_vgpr 256
  .amdhsa_next_free_sgpr 102
  .amdhsa_accum_offset 256
  .amdhsa_group_segment_fixed_size 0
  .amdhsa_kernarg_size 64
  .amdhsa_user_sgpr_count 2
  .amdhsa_user_sgpr_kernarg_segment_ptr 1
  .amdhsa_system_sgpr_workgroup_id_x 1
.end_amdhsa_kernel""")
open('standalone__mha_block_cached__near_ridge.s','w').write("\n".join(L)+"\n")
```
